```python
import torch

def _softmax(x, axis=-1):
    return torch.softmax(x, dim=axis)
def _gelu(x):
    return torch.nn.functional.gelu(x, approximate="tanh")
def _silu(x):
    return torch.nn.functional.silu(x)
def _sigmoid(x):
    return torch.sigmoid(x)
def _layernorm(x, axis=-1, eps=1e-5):
    m = x.mean(dim=axis, keepdim=True)
    v = x.var(dim=axis, keepdim=True, unbiased=False)
    return (x - m) / torch.sqrt(v + eps)
def _scatter_add(tgt, idx, src, axis=0):
    return tgt.clone().index_add_(axis, idx, src)
def _segment_sum(src, seg, n):
    out = torch.zeros((n,) + src.shape[1:], dtype=src.dtype)
    return out.index_add_(0, seg, src)
def _pad(x, pw):
    flat = tuple(v for pair in reversed(pw) for v in pair)
    return torch.nn.functional.pad(x, flat)

kernel_name = 'standalone__gqa_block_cached__sampling'

def setup_inputs():

    _w = (lambda a: (lambda t: t.to(torch.bfloat16) if t.is_floating_point() else t)(torch.as_tensor(a)))
    B, Sq, D = 32, 32, 1024
    Hq, Hkv, Sk, Dh = 32, 4, 2048, 128
    assert Hq % Hkv == 0, (Hq, Hkv)
    return {
        "x": _w((lambda *s: torch.randn(*s, dtype=torch.bfloat16) * 0.8)(B, Sq, D)),
        "k_cache": _w((lambda *s: torch.randn(*s, dtype=torch.bfloat16) * 0.8)(B, Hkv, Sk, Dh)),
        "v_cache": _w((lambda *s: torch.randn(*s, dtype=torch.bfloat16) * 0.05)(B, Hkv, Sk, Dh)),
        "wq": _w((lambda *s: torch.randn(*s, dtype=torch.bfloat16) * 0.8)(D, Hq * Dh) * (D ** -0.5)),
        "wo": _w((lambda *s: torch.randn(*s, dtype=torch.bfloat16) * 0.05)(Hq * Dh, D) * ((Hq * Dh) ** -0.5)),
    }

def reference(x, k_cache, v_cache, wq, wo):
    B, Sq, D = x.shape
    Hq, Dh = 32, 128
    Hkv = k_cache.shape[1]
    rep = Hq // Hkv
    q = (lambda x, *d: x.permute(*d))((x @ wq).reshape(B, Sq, Hq, Dh), 0, 2, 1, 3)
    k = (lambda x, n, axis: torch.repeat_interleave(x, n, dim=axis))(k_cache, rep, axis=1)
    v = (lambda x, n, axis: torch.repeat_interleave(x, n, dim=axis))(v_cache, rep, axis=1)
    scores = torch.einsum("bhqd,bhkd->bhqk", q, k) * (Dh ** -0.5)
    p = _softmax(scores, axis=-1)
    o = torch.einsum("bhqk,bhkd->bhqd", p, v)
    return (lambda x, *d: x.permute(*d))(o, 0, 2, 1, 3).reshape(B, Sq, Hq * Dh) @ wo
```

```python
import math
import sys

OUT_PATH = "standalone__gqa_block_cached__sampling.s"

KA_X, KA_K, KA_V, KA_WQ, KA_WO, KA_OUT, KA_DBG, KA_WS = [8 * i for i in range(8)]

B, SQ, D = 32, 32, 1024
HQ, HKV, SK, DH = 32, 4, 2048, 128
NTOK = B * SQ
WS_Q_OFF = 0
WS_O_OFF = NTOK * HQ * DH * 2


def v(i, n=1):
    return f"v{i}" if n == 1 else f"v[{i}:{i + n - 1}]"


def s(i, n=1):
    return f"s{i}" if n == 1 else f"s[{i}:{i + n - 1}]"


def lg2(x):
    r = int(math.log2(x))
    assert 1 << r == x, x
    return r


import os
GDIAG = os.environ.get("GEMM_DIAG", "")


class Kern:
    def __init__(self, name):
        self.name = name
        self.lines = []
        self.nv = 0
        self.ns = 0
        self.filt = False

    def e(self, t):
        if self.filt and GDIAG:
            if "nodma" in GDIAG and t.endswith("lds") and "buffer_load" in t:
                return
            if "noa" in GDIAG and t.endswith("lds") and "s[12:15]" in t:
                return
            if "nob" in GDIAG and t.endswith("lds") and "s[16:19]" in t:
                return
            if "nolds" in GDIAG and t.startswith("ds_read"):
                return
            if "nomfma" in GDIAG and t.startswith("v_mfma"):
                return
            if "nobar" in GDIAG and t.startswith("s_barrier"):
                return
        self.lines.append("    " + t)

    def c(self, t):
        self.lines.append("    ; " + t)

    def l(self, name):
        self.lines.append(name + ":")

    def text(self):
        head = [f".globl {self.name}", ".p2align 8", f".type {self.name},@function", f"{self.name}:"]
        return "\n".join(head + self.lines) + "\n"

    def desc(self):
        nv = (self.nv + 7) // 8 * 8
        return "\n".join([
            ".p2align 6",
            f".amdhsa_kernel {self.name}",
            f"  .amdhsa_next_free_vgpr {nv}",
            f"  .amdhsa_next_free_sgpr {self.ns}",
            f"  .amdhsa_accum_offset {(nv + 3) // 4 * 4}",
            "  .amdhsa_group_segment_fixed_size 0",
            "  .amdhsa_kernarg_size 64",
            "  .amdhsa_user_sgpr_count 2",
            "  .amdhsa_user_sgpr_kernarg_segment_ptr 1",
            "  .amdhsa_system_sgpr_workgroup_id_x 1",
            ".end_amdhsa_kernel",
        ]) + "\n"


class VAlloc:
    def __init__(self, start=0):
        self.n = start

    def __call__(self, n=1, align=1):
        self.n = (self.n + align - 1) // align * align
        r = self.n
        self.n += n
        return r


def emit_srd(k, sd, sptr, off, nbytes):
    if off:
        k.e(f"s_add_u32 {s(sd)}, {s(sptr)}, {off}")
        k.e(f"s_addc_u32 {s(sd + 1)}, {s(sptr + 1)}, 0")
    else:
        k.e(f"s_mov_b32 {s(sd)}, {s(sptr)}")
        k.e(f"s_mov_b32 {s(sd + 1)}, {s(sptr + 1)}")
    k.e(f"s_mov_b32 {s(sd + 2)}, {nbytes}")
    k.e(f"s_mov_b32 {s(sd + 3)}, 0x00020000")


def gen_gemm(name, *, M, N, K, BM, BN, a_slot, a_off, a_bytes, b_slot, b_off, b_bytes,
             c_slot, c_off, c_bytes, tile_map, NSTAGE=4, nt_a=False, nt_b=False, krot=False, selfpf=False):
    k = Kern(name)
    assert (BM, BN) in ((128, 128), (64, 64))
    if BM == 128:
        WM, WN, WK = 2, 4, 1
    else:
        WM, WN, WK = 2, 2, 2
    WTM = BM // WM
    MT = WTM // 32
    T = 4 // WK
    K2, N2 = K * 2, N * 2
    lgK2, lgN2 = lg2(K2), lg2(N2)
    A_SLOT = BM * 128
    B_RB = BN * 2
    B_SLOT = 64 * B_RB
    A_REGION = 0
    B_REGION = NSTAGE * A_SLOT
    LDS_BYTES = B_REGION + NSTAGE * B_SLOT
    NPA = BM // 64
    NPB = BN // 64
    niter = K // 64
    FULL_UNROLL = niter % NSTAGE != 0
    assert niter >= 2 * NSTAGE
    NWG = (M // BM) * (N // BN)

    S_A, S_B, S_C = 4, 6, 8
    SRD_A, SRD_B, SRD_C = 12, 16, 20
    S_WAVE, S_W1K, S_TM, S_TN, S_SOFFA, S_SOFFB, S_LOOP = 24, 25, 26, 27, 28, 29, 30
    S_T0, S_T1, S_T2, S_KW, S_MW, S_NW = 31, 32, 33, 34, 35, 36
    k.ns = 40

    va = VAlloc()
    vLane = va()
    t = [va() for _ in range(6)]
    vDA = [va() for _ in range(NPA)]
    vDB = [va() for _ in range(NPB)]
    WIN = 49152
    nwinA = (A_REGION + NSTAGE * A_SLOT + 4096 * (MT - 1) - 1) // WIN + 1 if A_REGION + NSTAGE * A_SLOT + 4096 > 65536 else 1
    nwinB = (NSTAGE * B_SLOT - 1) // WIN + 1 if NSTAGE * B_SLOT + 4096 > 65536 else 1
    vXaW = [[va() for _ in range(T)] for _ in range(nwinA)]
    vXa = vXaW[0]
    vWaW = [va() for _ in range(nwinB)]
    vWa = vWaW[0]
    vC = [va() for _ in range(MT)]
    acc = [va(16, 4) for _ in range(MT)]
    Xf = [[va(4, 4) for _ in range(MT)] for _ in range(T)]
    Wf = [va(4, 4) for _ in range(T)]
    vPF = va(4, 4) if selfpf else None
    vPFo = va() if selfpf else None
    k.nv = va.n

    k.e(f"s_cmp_ge_u32 s2, {NWG}")
    k.e(f"s_cbranch_scc1 L_{name}_end")
    k.e(f"s_load_dwordx2 {s(S_A, 2)}, s[0:1], {a_slot}")
    k.e(f"s_load_dwordx2 {s(S_B, 2)}, s[0:1], {b_slot}")
    k.e(f"s_load_dwordx2 {s(S_C, 2)}, s[0:1], {c_slot}")
    k.e(f"v_lshrrev_b32 {v(t[0])}, 6, v0")
    k.e(f"v_and_b32 {v(vLane)}, 63, v0")
    k.e("s_nop 1")
    k.e(f"v_readfirstlane_b32 {s(S_WAVE)}, {v(t[0])}")
    k.e("s_nop 3")
    k.e(f"s_lshl_b32 {s(S_W1K)}, {s(S_WAVE)}, 10")
    tile_map(k, S_TM, S_TN, S_T0)
    k.e(f"s_and_b32 {s(S_MW)}, {s(S_WAVE)}, 1")
    if WK == 1:
        k.e(f"s_lshr_b32 {s(S_NW)}, {s(S_WAVE)}, 1")
        k.e(f"s_mov_b32 {s(S_KW)}, 0")
    else:
        k.e(f"s_lshr_b32 {s(S_NW)}, {s(S_WAVE)}, 1")
        k.e(f"s_and_b32 {s(S_NW)}, {s(S_NW)}, 1")
        k.e(f"s_lshr_b32 {s(S_KW)}, {s(S_WAVE)}, 2")
    k.e("s_waitcnt lgkmcnt(0)")
    emit_srd(k, SRD_A, S_A, a_off, a_bytes)
    emit_srd(k, SRD_B, S_B, b_off, b_bytes)
    emit_srd(k, SRD_C, S_C, c_off, c_bytes)

    k.c("A DMA voffset")
    k.e(f"v_lshrrev_b32 {v(t[0])}, 3, {v(vLane)}")
    k.e(f"v_and_b32 {v(t[1])}, 7, {v(vLane)}")
    k.e(f"v_lshrrev_b32 {v(t[2])}, 4, {v(vLane)}")
    k.e(f"s_lshl_b32 {s(S_T0)}, {s(S_WAVE)}, 2")
    k.e(f"v_add_u32 {v(t[2])}, {s(S_T0)}, {v(t[2])}")
    k.e(f"v_and_b32 {v(t[2])}, 7, {v(t[2])}")
    k.e(f"v_xor_b32 {v(t[1])}, {v(t[1])}, {v(t[2])}")
    k.e(f"s_lshl_b32 {s(S_T0)}, {s(S_WAVE)}, 3")
    k.e(f"s_mul_i32 {s(S_T1)}, {s(S_TM)}, {BM}")
    k.e(f"s_add_u32 {s(S_T0)}, {s(S_T0)}, {s(S_T1)}")
    k.e(f"v_add_u32 {v(t[0])}, {s(S_T0)}, {v(t[0])}")
    k.e(f"v_lshlrev_b32 {v(t[0])}, {lgK2}, {v(t[0])}")
    k.e(f"v_lshl_add_u32 {v(vDA[0])}, {v(t[1])}, 4, {v(t[0])}")
    if NPA == 2:
        k.e(f"s_mov_b32 {s(S_T0)}, {64 * K2}")
        k.e(f"v_add_u32 {v(vDA[1])}, {s(S_T0)}, {v(vDA[0])}")

    k.c("B DMA voffset")
    if BN == 128:
        k.e(f"v_lshrrev_b32 {v(t[0])}, 4, {v(vLane)}")
        k.e(f"v_and_b32 {v(t[1])}, 15, {v(vLane)}")
        k.e(f"v_lshlrev_b32 {v(t[2])}, 2, {v(t[0])}")
        k.e(f"v_xor_b32 {v(t[1])}, {v(t[1])}, {v(t[2])}")
        k.e(f"s_lshl_b32 {s(S_T0)}, {s(S_WAVE)}, 2")
        k.e(f"v_add_u32 {v(t[0])}, {s(S_T0)}, {v(t[0])}")
    else:
        k.e(f"v_lshrrev_b32 {v(t[0])}, 3, {v(vLane)}")
        k.e(f"v_and_b32 {v(t[1])}, 7, {v(vLane)}")
        k.e(f"v_lshrrev_b32 {v(t[2])}, 4, {v(vLane)}")
        k.e(f"v_and_b32 {v(t[2])}, 1, {v(t[2])}")
        k.e(f"v_lshlrev_b32 {v(t[2])}, 2, {v(t[2])}")
        k.e(f"v_xor_b32 {v(t[1])}, {v(t[1])}, {v(t[2])}")
        k.e(f"s_lshl_b32 {s(S_T0)}, {s(S_WAVE)}, 3")
        k.e(f"v_add_u32 {v(t[0])}, {s(S_T0)}, {v(t[0])}")
    k.e(f"v_lshlrev_b32 {v(t[0])}, {lgN2}, {v(t[0])}")
    k.e(f"v_lshl_add_u32 {v(t[0])}, {v(t[1])}, 4, {v(t[0])}")
    k.e(f"s_mul_i32 {s(S_T0)}, {s(S_TN)}, {BN * 2}")
    k.e(f"v_add_u32 {v(vDB[0])}, {s(S_T0)}, {v(t[0])}")
    if NPB == 2:
        k.e(f"s_mov_b32 {s(S_T0)}, {32 * N2}")
        k.e(f"v_add_u32 {v(vDB[1])}, {s(S_T0)}, {v(vDB[0])}")

    k.c("X fragment LDS addresses")
    k.e(f"v_and_b32 {v(t[0])}, 31, {v(vLane)}")
    k.e(f"v_lshrrev_b32 {v(t[1])}, 1, {v(t[0])}")
    k.e(f"v_and_b32 {v(t[1])}, 7, {v(t[1])}")
    k.e(f"v_lshrrev_b32 {v(t[2])}, 5, {v(vLane)}")
    k.e(f"v_xor_b32 {v(t[1])}, {v(t[1])}, {v(t[2])}")
    k.e(f"s_mul_i32 {s(S_T0)}, {s(S_MW)}, {WTM}")
    k.e(f"v_add_u32 {v(t[0])}, {s(S_T0)}, {v(t[0])}")
    k.e(f"v_lshlrev_b32 {v(t[0])}, 7, {v(t[0])}")
    k.e(f"v_lshl_add_u32 {v(t[0])}, {v(t[1])}, 4, {v(t[0])}")
    for tt in range(T):
        if WK == 1:
            if tt == 0:
                k.e(f"v_mov_b32 {v(vXa[0])}, {v(t[0])}")
            else:
                k.e(f"v_xor_b32 {v(vXa[tt])}, {tt << 5}, {v(t[0])}")
        else:
            k.e(f"s_add_u32 {s(S_T0)}, {s(S_KW)}, {2 * tt}")
            k.e(f"s_lshl_b32 {s(S_T0)}, {s(S_T0)}, 5")
            k.e(f"v_xor_b32 {v(vXa[tt])}, {s(S_T0)}, {v(t[0])}")

    k.c("W fragment LDS address")
    k.e(f"v_and_b32 {v(t[0])}, 15, {v(vLane)}")
    k.e(f"v_lshrrev_b32 {v(t[1])}, 2, {v(t[0])}")
    k.e(f"v_and_b32 {v(t[0])}, 3, {v(t[0])}")
    k.e(f"v_lshrrev_b32 {v(t[2])}, 5, {v(vLane)}")
    k.e(f"v_lshl_add_u32 {v(t[2])}, {v(t[2])}, 3, {v(t[1])}")
    k.e(f"v_lshlrev_b32 {v(t[2])}, {lg2(B_RB)}, {v(t[2])}")
    k.e(f"v_lshl_add_u32 {v(t[2])}, {v(t[0])}, 3, {v(t[2])}")
    k.e(f"v_lshrrev_b32 {v(t[0])}, 4, {v(vLane)}")
    k.e(f"v_and_b32 {v(t[0])}, 1, {v(t[0])}")
    k.e(f"v_lshl_add_u32 {v(t[2])}, {v(t[0])}, 5, {v(t[2])}")
    if BN == 128:
        k.e(f"v_xor_b32 {v(t[1])}, {s(S_NW)}, {v(t[1])}")
    else:
        k.e(f"v_lshrrev_b32 {v(t[1])}, 1, {v(t[1])}")
        k.e(f"v_xor_b32 {v(t[1])}, {s(S_NW)}, {v(t[1])}")
    k.e(f"v_lshl_add_u32 {v(t[2])}, {v(t[1])}, 6, {v(t[2])}")
    k.e(f"s_lshl_b32 {s(S_T0)}, {s(S_KW)}, 11")
    k.e(f"s_add_u32 {s(S_T0)}, {s(S_T0)}, {B_REGION}")
    k.e(f"v_add_u32 {v(vWa)}, {s(S_T0)}, {v(t[2])}")

    for w in range(1, nwinA):
        for tt in range(T):
            k.e(f"v_add_u32 {v(vXaW[w][tt])}, {w * WIN}, {v(vXa[tt])}")
    for w in range(1, nwinB):
        k.e(f"v_add_u32 {v(vWaW[w])}, {w * WIN}, {v(vWa)}")

    k.c("C store voffsets")
    k.e(f"v_and_b32 {v(t[0])}, 31, {v(vLane)}")
    k.e(f"s_mul_i32 {s(S_T0)}, {s(S_TM)}, {BM}")
    k.e(f"s_mul_i32 {s(S_T1)}, {s(S_MW)}, {WTM}")
    k.e(f"s_add_u32 {s(S_T0)}, {s(S_T0)}, {s(S_T1)}")
    k.e(f"v_add_u32 {v(t[0])}, {s(S_T0)}, {v(t[0])}")
    k.e(f"v_lshlrev_b32 {v(t[0])}, {lgN2}, {v(t[0])}")
    k.e(f"v_lshrrev_b32 {v(t[1])}, 5, {v(vLane)}")
    k.e(f"v_lshl_add_u32 {v(t[0])}, {v(t[1])}, 4, {v(t[0])}")
    k.e(f"s_mul_i32 {s(S_T0)}, {s(S_TN)}, {BN * 2}")
    k.e(f"s_lshl_b32 {s(S_T1)}, {s(S_NW)}, 6")
    k.e(f"s_add_u32 {s(S_T0)}, {s(S_T0)}, {s(S_T1)}")
    k.e(f"v_add_u32 {v(vC[0])}, {s(S_T0)}, {v(t[0])}")
    if MT == 2:
        k.e(f"s_mov_b32 {s(S_T0)}, {32 * N2}")
        k.e(f"v_add_u32 {v(vC[1])}, {s(S_T0)}, {v(vC[0])}")

    for mt in range(MT):
        for i in range(16):
            k.e(f"v_mov_b32 {v(acc[mt] + i)}, 0")

    if krot:
        k.e(f"s_lshr_b32 {s(S_T0)}, s2, 3")
        k.e(f"s_and_b32 {s(S_T0)}, {s(S_T0)}, {niter - 1}")
        k.e(f"s_lshl_b32 {s(S_SOFFA)}, {s(S_T0)}, 7")
        k.e(f"s_mul_i32 {s(S_SOFFB)}, {s(S_T0)}, {64 * N2}")
    else:
        k.e(f"s_mov_b32 {s(S_SOFFA)}, 0")
        k.e(f"s_mov_b32 {s(S_SOFFB)}, 0")

    def issue_stage(slot):
        for j in range(NPA):
            k.e(f"s_add_u32 m0, {s(S_W1K)}, {A_REGION + slot * A_SLOT + j * 8192}")
            k.e("s_nop 0")
            k.e(f"buffer_load_dwordx4 {v(vDA[j])}, {s(SRD_A, 4)}, {s(S_SOFFA)} offen{' nt' if nt_a else ''} lds")
        for j in range(NPB):
            k.e(f"s_add_u32 m0, {s(S_W1K)}, {B_REGION + slot * B_SLOT + j * 8192}")
            k.e("s_nop 0")
            k.e(f"buffer_load_dwordx4 {v(vDB[j])}, {s(SRD_B, 4)}, {s(S_SOFFB)} offen{' nt' if nt_b else ''} lds")
        k.e(f"s_add_u32 {s(S_SOFFA)}, {s(S_SOFFA)}, 128")
        k.e(f"s_add_u32 {s(S_SOFFB)}, {s(S_SOFFB)}, {64 * N2}")
        if krot:
            k.e(f"s_cmp_eq_u32 {s(S_SOFFA)}, {K2}")
            k.e(f"s_cselect_b32 {s(S_SOFFA)}, 0, {s(S_SOFFA)}")
            k.e(f"s_cselect_b32 {s(S_SOFFB)}, 0, {s(S_SOFFB)}")

    DMAS = NPA + NPB

    def reads(tt, slot):
        for q in range(2):
            off = slot * B_SLOT + 4096 * tt + 4 * B_RB * q
            w = off // WIN if nwinB > 1 else 0
            k.e(f"ds_read_b64_tr_b16 {v(Wf[tt] + 2 * q, 2)}, {v(vWaW[w])} offset:{off - w * WIN}")
        for mt in range(MT):
            off = A_REGION + slot * A_SLOT + 4096 * mt
            w = off // WIN if nwinA > 1 else 0
            k.e(f"ds_read_b128 {v(Xf[tt][mt], 4)}, {v(vXaW[w][tt])} offset:{off - w * WIN}")

    RPG = 2 + MT

    def compute(slot):
        PRE = min(T, 3)
        for g in range(PRE):
            reads(g, slot)
        for g in range(T):
            n_after = (min(T, g + PRE) - (g + 1)) * RPG
            k.e(f"s_waitcnt lgkmcnt({n_after})")
            for mt in range(MT):
                k.e(f"v_mfma_f32_32x32x16_bf16 {v(acc[mt], 16)}, {v(Wf[g], 4)}, {v(Xf[g][mt], 4)}, {v(acc[mt], 16)}")
            if g + PRE < T:
                reads(g + PRE, slot)

    PF = NSTAGE - 1
    NPFL_ = [0]

    def iteration(it):
        slot = it % NSTAGE
        issue = it + PF < niter
        vm = min(PF - 1, niter - 1 - it) * DMAS
        if it == 0:
            vm += NPFL_[0]
        k.e(f"s_waitcnt vmcnt({vm}) lgkmcnt(0)")
        k.e("s_barrier")
        if issue:
            issue_stage((it + PF) % NSTAGE)
        compute(slot)

    k.filt = True
    k.c("prologue: first PF stages")
    for st in range(PF):
        issue_stage(st)
    NPFL = 0
    if selfpf:
        k.c("self-prefetch: each WG touches a distinct slice of A and B (pulls them on-die at full HBM parallelism)")
        for (srd, total) in ((SRD_A, a_bytes), (SRD_B, b_bytes)):
            per_wave = total // NWG // 8
            k.e(f"s_lshl_b32 {s(S_T0)}, s2, 3")
            k.e(f"s_add_u32 {s(S_T0)}, {s(S_T0)}, {s(S_WAVE)}")
            k.e(f"s_mul_i32 {s(S_T0)}, {s(S_T0)}, {per_wave}")
            k.e(f"v_lshlrev_b32 {v(vPFo)}, 4, {v(vLane)}")
            k.e(f"v_add_u32 {v(vPFo)}, {s(S_T0)}, {v(vPFo)}")
            for j in range(per_wave // 1024):
                k.e(f"buffer_load_dwordx4 {v(vPF, 4)}, {v(vPFo)}, {s(srd, 4)}, 0 offen offset:{1024 * j}")
                NPFL += 1
    NPFL_[0] = NPFL
    if FULL_UNROLL:
        for it in range(niter):
            iteration(it)
    else:
        nsteady = niter - PF
        nblocks = nsteady // NSTAGE
        k.e(f"s_mov_b32 {s(S_LOOP)}, {nblocks}")
        k.l(f"L_{name}_loop")
        for it in range(NSTAGE):
            iteration(it)
        k.e(f"s_sub_u32 {s(S_LOOP)}, {s(S_LOOP)}, 1")
        k.e(f"s_cmp_lg_u32 {s(S_LOOP)}, 0")
        k.e(f"s_cbranch_scc1 L_{name}_loop")
        k.c("tail")
        for it in range(nblocks * NSTAGE, niter):
            iteration(it)
    k.filt = False
    k.e("s_nop 15")

    if WK == 2:
        k.c("k-split reduction through LDS")
        k.e("s_barrier")
        k.e(f"s_and_b32 {s(S_T0)}, {s(S_WAVE)}, 3")
        k.e(f"s_lshl_b32 {s(S_T0)}, {s(S_T0)}, 12")
        k.e(f"v_lshlrev_b32 {v(t[0])}, 4, {v(vLane)}")
        k.e(f"v_add_u32 {v(t[0])}, {s(S_T0)}, {v(t[0])}")
        k.e(f"s_cmp_eq_u32 {s(S_KW)}, 0")
        k.e(f"s_cbranch_scc1 L_{name}_red_wait")
        for q in range(4):
            k.e(f"ds_write_b128 {v(t[0])}, {v(acc[0] + 4 * q, 4)} offset:{1024 * q}")
        k.e("s_waitcnt lgkmcnt(0)")
        k.l(f"L_{name}_red_wait")
        k.e("s_barrier")
        k.e(f"s_cmp_lg_u32 {s(S_KW)}, 0")
        k.e(f"s_cbranch_scc1 L_{name}_end")
        for q in range(4):
            k.e(f"ds_read_b128 {v(Xf[0][0] if q == 0 else (Xf[1][0] if q == 1 else (Wf[0] if q == 2 else Wf[1])), 4)}, {v(t[0])} offset:{1024 * q}")
        k.e("s_waitcnt lgkmcnt(0)")
        srcs = [Xf[0][0], Xf[1][0], Wf[0], Wf[1]]
        for q in range(4):
            for i in range(4):
                k.e(f"v_add_f32 {v(acc[0] + 4 * q + i)}, {v(acc[0] + 4 * q + i)}, {v(srcs[q] + i)}")

    k.c("epilogue")
    stage_regs = []
    if WK == 1:
        for tt in range(T):
            for mt in range(MT):
                stage_regs.append(Xf[tt][mt])
    else:
        stage_regs = [Xf[0][0], Xf[1][0], Wf[0], Wf[1]]
    LDS_EPI = WK == 1 and "direpi" not in GDIAG
    if LDS_EPI:
        k.c("transpose the bf16 tile through LDS so that every store writes full 256B row segments")
        k.e("s_barrier")
        k.e(f"v_and_b32 {v(t[0])}, 31, {v(vLane)}")
        k.e(f"v_and_b32 {v(t[1])}, 15, {v(t[0])}")
        k.e(f"v_lshrrev_b32 {v(t[2])}, 5, {v(vLane)}")
        k.e(f"s_lshl_b32 {s(S_T0)}, {s(S_NW)}, 2")
        k.e(f"v_add_u32 {v(t[2])}, {s(S_T0)}, {v(t[2])}")
        k.e(f"v_xor_b32 {v(t[2])}, {v(t[2])}, {v(t[1])}")
        k.e(f"s_mul_i32 {s(S_T0)}, {s(S_MW)}, {WTM}")
        k.e(f"v_add_u32 {v(t[0])}, {s(S_T0)}, {v(t[0])}")
        k.e(f"v_lshlrev_b32 {v(t[0])}, 8, {v(t[0])}")
        k.e(f"v_lshl_add_u32 {v(t[0])}, {v(t[2])}, 4, {v(t[0])}")
        k.e(f"v_xor_b32 {v(t[1])}, 32, {v(t[0])}")
    si = 0
    for mt in range(MT):
        for gp in (0, 2):
            e0 = stage_regs[si]
            si += 1
            a = acc[mt] + 4 * gp
            for i in range(4):
                k.e(f"v_cvt_pk_bf16_f32 {v(e0 + i)}, {v(a + 2 * i)}, {v(a + 2 * i + 1)}")
            k.e("s_nop 1")
            k.e(f"v_permlane32_swap_b32 {v(e0)}, {v(e0 + 2)}")
            k.e(f"v_permlane32_swap_b32 {v(e0 + 1)}, {v(e0 + 3)}")
            k.e("s_nop 1")
            if LDS_EPI:
                k.e(f"ds_write_b128 {v(t[0] if gp == 0 else t[1])}, {v(e0, 4)} offset:{8192 * mt}")
            elif "nostore" not in GDIAG:
                k.e(f"buffer_store_dwordx4 {v(e0, 4)}, {v(vC[mt])}, {s(SRD_C, 4)}, 0 offen offset:{16 * gp}")
    if LDS_EPI:
        k.e("s_waitcnt lgkmcnt(0)")
        k.e("s_barrier")
        k.e(f"v_lshrrev_b32 {v(t[0])}, 4, {v(vLane)}")
        k.e(f"v_and_b32 {v(t[1])}, 15, {v(vLane)}")
        k.e(f"s_lshl_b32 {s(S_T0)}, {s(S_WAVE)}, 4")
        k.e(f"v_add_u32 {v(t[2])}, {s(S_T0)}, {v(t[0])}")
        k.e(f"s_mul_i32 {s(S_T0)}, {s(S_TM)}, {BM}")
        k.e(f"v_add_u32 {v(t[3])}, {s(S_T0)}, {v(t[2])}")
        k.e(f"v_lshlrev_b32 {v(t[3])}, {lgN2}, {v(t[3])}")
        k.e(f"v_lshl_add_u32 {v(t[3])}, {v(t[1])}, 4, {v(t[3])}")
        k.e(f"s_mul_i32 {s(S_T0)}, {s(S_TN)}, {BN * 2}")
        k.e(f"v_add_u32 {v(t[3])}, {s(S_T0)}, {v(t[3])}")
        for j in range(4):
            k.e(f"v_add_u32 {v(t[4])}, {4 * j}, {v(t[0])}")
            k.e(f"v_xor_b32 {v(t[4])}, {v(t[1])}, {v(t[4])}")
            k.e(f"v_add_u32 {v(t[5])}, {4 * j}, {v(t[2])}")
            k.e(f"v_lshlrev_b32 {v(t[5])}, 8, {v(t[5])}")
            k.e(f"v_lshl_add_u32 {v(t[5])}, {v(t[4])}, 4, {v(t[5])}")
            k.e(f"ds_read_b128 {v(stage_regs[j], 4)}, {v(t[5])}")
        for j in range(4):
            k.e(f"s_waitcnt lgkmcnt({3 - j})")
            if j:
                k.e(f"v_add_u32 {v(t[3])}, {4 * N2}, {v(t[3])}")
            if "nostore" not in GDIAG:
                k.e(f"buffer_store_dwordx4 {v(stage_regs[j], 4)}, {v(t[3])}, {s(SRD_C, 4)}, 0 offen")
    k.l(f"L_{name}_end")
    k.e("s_endpgm")
    return k, LDS_BYTES, NWG


def tile_map_qproj(k, S_TM, S_TN, S_T0):
    k.e(f"s_and_b32 {s(S_T0)}, s2, 7")
    k.e(f"s_lshl_b32 {s(S_T0)}, {s(S_T0)}, 2")
    k.e(f"s_lshr_b32 {s(S_TN)}, s2, 3")
    k.e(f"s_and_b32 {s(S_TN)}, {s(S_TN)}, 3")
    k.e(f"s_add_u32 {s(S_TN)}, {s(S_TN)}, {s(S_T0)}")
    k.e(f"s_lshr_b32 {s(S_TM)}, s2, 5")


def tile_map_oproj(k, S_TM, S_TN, S_T0):
    k.e(f"s_and_b32 {s(S_T0)}, s2, 7")
    k.e(f"s_lshr_b32 {s(S_T0)}, {s(S_T0)}, 1")
    k.e(f"s_lshl_b32 {s(S_T0)}, {s(S_T0)}, 2")
    k.e(f"s_lshr_b32 {s(S_TM)}, s2, 3")
    k.e(f"s_and_b32 {s(S_TM)}, {s(S_TM)}, 3")
    k.e(f"s_add_u32 {s(S_TM)}, {s(S_TM)}, {s(S_T0)}")
    k.e(f"s_and_b32 {s(S_T0)}, s2, 1")
    k.e(f"s_lshl_b32 {s(S_T0)}, {s(S_T0)}, 3")
    k.e(f"s_lshr_b32 {s(S_TN)}, s2, 5")
    k.e(f"s_add_u32 {s(S_TN)}, {s(S_TN)}, {s(S_T0)}")


def build_file(kernels):
    out = []
    for kern, grid, block, lds in kernels:
        out.append(f"; @launch kernel={kern.name} grid=({grid[0]},{grid[1]},{grid[2]}) block=({block[0]},{block[1]},{block[2]}) lds={lds}")
    out.append('.amdgcn_target "amdgcn-amd-amdhsa--gfx950"')
    out.append(".text")
    for kern, *_ in kernels:
        out.append(kern.text())
    out.append('.section .rodata,"a"')
    for kern, *_ in kernels:
        out.append(kern.desc())
    return "\n".join(out)
```

```python
import math
import struct
from gen import *


def f32bits(x):
    return struct.unpack("<I", struct.pack("<f", x))[0]


NST = 4
STAGE_KEYS = 32
NITER = 1024 // STAGE_KEYS
GROUP_LDS = 65536
SLOT_LDS = 16384
V_OFF = 8192
LDS_BYTES = 2 * GROUP_LDS


import os
DIAG = os.environ.get('ATTN_DIAG', '')

def gen_attn(name):
    k = Kern(name)
    NWG = 256
    S_WS, S_K, S_V = 4, 6, 8
    SRD_Q, SRD_K, SRD_V, SRD_O = 12, 16, 20, 24
    S_WAVE, S_G, S_HW, S_LDSW, S_KVOFF, S_P, S_QH, S_C, S_THR, S_LOOP = 28, 29, 30, 31, 32, 33, 34, 35, 36, 37
    S_T0, S_T1, S_T2, S_HQ = 38, 39, 40, 41
    S_STG, S_SOFF = 42, 43
    k.ns = 48

    va = VAlloc()
    vLane = va()
    t = [va() for _ in range(8)]
    vMC = va()
    vL = va()
    tp = va(2, 2)
    vDK = [va(), va()]
    vDV = [va(), va()]
    aK = [va() for _ in range(8)]
    aV = [va() for _ in range(4)]
    P = va(8, 4)
    Q = va(32, 4)
    S = va(16, 16)
    O = [va(16, 16) for _ in range(4)]
    Kf = va(32, 4)
    Vf = va(32, 4)
    k.nv = va.n
    assert k.nv <= 256, k.nv

    scale_c = math.log2(math.e) / math.sqrt(DH)

    k.e(f"s_cmp_ge_u32 s2, {NWG}")
    k.e(f"s_cbranch_scc1 L_{name}_end")
    if "clock" in DIAG:
        k.ns = 64
        k.e("s_memtime s[50:51]")
        k.e("s_memrealtime s[52:53]")
        k.e(f"s_load_dwordx2 s[58:59], s[0:1], {KA_DBG}")
    k.e(f"s_load_dwordx2 {s(S_WS, 2)}, s[0:1], {KA_WS}")
    k.e(f"s_load_dwordx2 {s(S_K, 2)}, s[0:1], {KA_K}")
    k.e(f"s_load_dwordx2 {s(S_V, 2)}, s[0:1], {KA_V}")
    k.e(f"v_lshrrev_b32 {v(t[0])}, 6, v0")
    k.e(f"v_and_b32 {v(vLane)}, 63, v0")
    k.e("s_nop 1")
    k.e(f"v_readfirstlane_b32 {s(S_WAVE)}, {v(t[0])}")
    k.e("s_nop 3")
    k.e(f"s_lshr_b32 {s(S_G)}, {s(S_WAVE)}, 2")
    k.e(f"s_and_b32 {s(S_HW)}, {s(S_WAVE)}, 3")
    k.e(f"s_lshr_b32 {s(S_P)}, s2, 4")
    k.e(f"s_lshl_b32 {s(S_P)}, {s(S_P)}, 3")
    k.e(f"s_and_b32 {s(S_T0)}, s2, 7")
    k.e(f"s_add_u32 {s(S_P)}, {s(S_P)}, {s(S_T0)}")
    k.e(f"s_lshr_b32 {s(S_QH)}, s2, 3")
    k.e(f"s_and_b32 {s(S_QH)}, {s(S_QH)}, 1")
    k.e(f"s_lshl_b32 {s(S_LDSW)}, {s(S_G)}, 16")
    k.e(f"s_lshl_b32 {s(S_T0)}, {s(S_HW)}, 10")
    k.e(f"s_add_u32 {s(S_LDSW)}, {s(S_LDSW)}, {s(S_T0)}")
    k.e(f"s_lshl_b32 {s(S_KVOFF)}, {s(S_P)}, 19")
    if "optB" in DIAG:
        k.e(f"s_lshl_b32 {s(S_T0)}, {s(S_QH)}, 18")
    else:
        k.e(f"s_lshl_b32 {s(S_T0)}, {s(S_G)}, 18")
    k.e(f"s_add_u32 {s(S_KVOFF)}, {s(S_KVOFF)}, {s(S_T0)}")
    k.e(f"s_and_b32 {s(S_STG)}, {s(S_P)}, 31")
    k.e(f"s_lshl_b32 {s(S_STG)}, {s(S_STG)}, 13")
    k.e(f"s_and_b32 {s(S_HQ)}, {s(S_P)}, 3")
    k.e(f"s_lshl_b32 {s(S_HQ)}, {s(S_HQ)}, 3")
    k.e(f"s_lshl_b32 {s(S_T0)}, {s(S_QH)}, 2")
    k.e(f"s_add_u32 {s(S_HQ)}, {s(S_HQ)}, {s(S_T0)}")
    k.e(f"s_add_u32 {s(S_HQ)}, {s(S_HQ)}, {s(S_HW)}")
    k.e(f"s_mov_b32 {s(S_C)}, {f32bits(scale_c):#x}")
    k.e(f"s_mov_b32 {s(S_THR)}, {f32bits(8.0):#x}")
    k.e("s_waitcnt lgkmcnt(0)")
    emit_srd(k, SRD_Q, S_WS, WS_Q_OFF, NTOK * HQ * DH * 2)
    emit_srd(k, SRD_K, S_K, 0, B * HKV * SK * DH * 2)
    emit_srd(k, SRD_V, S_V, 0, B * HKV * SK * DH * 2)
    emit_srd(k, SRD_O, S_WS, WS_O_OFF, NTOK * HQ * DH * 2)

    k.c("Q fragment loads")
    k.e(f"v_and_b32 {v(t[0])}, 31, {v(vLane)}")
    k.e(f"s_lshr_b32 {s(S_T0)}, {s(S_P)}, 2")
    k.e(f"s_lshl_b32 {s(S_T0)}, {s(S_T0)}, 5")
    k.e(f"v_add_u32 {v(t[0])}, {s(S_T0)}, {v(t[0])}")
    k.e(f"v_lshlrev_b32 {v(t[0])}, 13, {v(t[0])}")
    k.e(f"v_lshrrev_b32 {v(t[1])}, 5, {v(vLane)}")
    k.e(f"v_lshl_add_u32 {v(t[0])}, {v(t[1])}, 4, {v(t[0])}")
    k.e(f"s_lshl_b32 {s(S_T0)}, {s(S_HQ)}, 8")
    k.e(f"v_add_u32 {v(t[7])}, {s(S_T0)}, {v(t[0])}")
    for ss in range(8):
        k.e(f"buffer_load_dwordx4 {v(Q + 4 * ss, 4)}, {v(t[7])}, {s(SRD_Q, 4)}, 0 offen offset:{32 * ss}")

    k.c("DMA voffsets")
    k.e(f"v_lshrrev_b32 {v(t[0])}, 4, {v(vLane)}")
    k.e(f"v_and_b32 {v(t[1])}, 15, {v(vLane)}")
    k.e(f"s_lshl_b32 {s(S_T0)}, {s(S_HW)}, 2")
    k.e(f"v_add_u32 {v(t[2])}, {s(S_T0)}, {v(t[0])}")
    k.e(f"v_xor_b32 {v(t[3])}, {v(t[1])}, {v(t[2])}")
    k.e(f"v_lshlrev_b32 {v(t[4])}, 8, {v(t[2])}")
    k.e(f"v_lshl_add_u32 {v(vDK[0])}, {v(t[3])}, 4, {v(t[4])}")
    k.e(f"v_add_u32 {v(vDK[1])}, 4096, {v(vDK[0])}")
    k.e(f"v_lshlrev_b32 {v(t[3])}, 2, {v(t[0])}")
    k.e(f"v_xor_b32 {v(t[3])}, {v(t[1])}, {v(t[3])}")
    k.e(f"v_lshl_add_u32 {v(vDV[0])}, {v(t[3])}, 4, {v(t[4])}")
    k.e(f"v_add_u32 {v(vDV[1])}, 4096, {v(vDV[0])}")

    k.c("K fragment LDS addresses")
    k.e(f"v_and_b32 {v(t[0])}, 31, {v(vLane)}")
    k.e(f"v_lshrrev_b32 {v(t[1])}, 5, {v(vLane)}")
    k.e(f"v_and_b32 {v(t[2])}, 15, {v(t[0])}")
    k.e(f"v_xor_b32 {v(t[1])}, {v(t[1])}, {v(t[2])}")
    k.e(f"v_lshlrev_b32 {v(t[0])}, 8, {v(t[0])}")
    k.e(f"v_lshl_add_u32 {v(t[0])}, {v(t[1])}, 4, {v(t[0])}")
    k.e(f"s_lshl_b32 {s(S_T0)}, {s(S_G)}, 16")
    k.e(f"v_add_u32 {v(aK[0])}, {s(S_T0)}, {v(t[0])}")
    for ss in range(1, 8):
        k.e(f"v_xor_b32 {v(aK[ss])}, {ss << 5}, {v(aK[0])}")

    k.c("V fragment LDS addresses")
    k.e(f"v_and_b32 {v(t[0])}, 15, {v(vLane)}")
    k.e(f"v_lshrrev_b32 {v(t[1])}, 2, {v(t[0])}")
    k.e(f"v_and_b32 {v(t[0])}, 3, {v(t[0])}")
    k.e(f"v_lshrrev_b32 {v(t[2])}, 5, {v(vLane)}")
    k.e(f"v_lshl_add_u32 {v(t[2])}, {v(t[2])}, 2, {v(t[1])}")
    k.e(f"v_lshlrev_b32 {v(t[2])}, 8, {v(t[2])}")
    k.e(f"v_lshl_add_u32 {v(t[2])}, {v(t[0])}, 3, {v(t[2])}")
    k.e(f"v_lshrrev_b32 {v(t[0])}, 4, {v(vLane)}")
    k.e(f"v_and_b32 {v(t[0])}, 1, {v(t[0])}")
    k.e(f"v_lshl_add_u32 {v(t[2])}, {v(t[0])}, 5, {v(t[2])}")
    k.e(f"v_lshl_add_u32 {v(t[2])}, {v(t[1])}, 6, {v(t[2])}")
    k.e(f"s_lshl_b32 {s(S_T0)}, {s(S_G)}, 16")
    k.e(f"s_add_u32 {s(S_T0)}, {s(S_T0)}, {V_OFF}")
    k.e(f"v_add_u32 {v(aV[0])}, {s(S_T0)}, {v(t[2])}")
    for d in range(1, 4):
        k.e(f"v_xor_b32 {v(aV[d])}, {d << 6}, {v(aV[0])}")

    k.e(f"v_mov_b32 {v(vMC)}, 0xff800000")
    k.e(f"v_mov_b32 {v(vL)}, 0")
    for d in range(4):
        for i in range(16):
            k.e(f"v_mov_b32 {v(O[d] + i)}, 0")

    ROT = "rot" in DIAG
    NTF = " nt" if "nt" in DIAG.split(",") else ""

    def dma_groups(slot):
        g = []
        soff = s(S_SOFF) if ROT else s(S_KVOFF)
        for j in range(2):
            g.append([f"s_add_u32 m0, {s(S_LDSW)}, {slot * SLOT_LDS + 4096 * j}",
                      "s_nop 0",
                      f"buffer_load_dwordx4 {v(vDK[j])}, {s(SRD_K, 4)}, {soff} offen{NTF} lds"])
        for j in range(2):
            g.append([f"s_add_u32 m0, {s(S_LDSW)}, {slot * SLOT_LDS + V_OFF + 4096 * j}",
                      "s_nop 0",
                      f"buffer_load_dwordx4 {v(vDV[j])}, {s(SRD_V, 4)}, {soff} offen{NTF} lds"])
        if ROT:
            g[0].insert(0, f"s_add_u32 {s(S_SOFF)}, {s(S_KVOFF)}, {s(S_STG)}")
            g[-1].append(f"s_add_u32 {s(S_STG)}, {s(S_STG)}, {STAGE_KEYS * 256}")
            g[-1].append(f"s_and_b32 {s(S_STG)}, {s(S_STG)}, 0x3ffff")
        else:
            g[-1].append(f"s_add_u32 {s(S_KVOFF)}, {s(S_KVOFF)}, {STAGE_KEYS * 256}")
        return g

    if DIAG == "nodma":
        _dg = dma_groups
        def dma_groups(slot):
            return [[i for i in g if "buffer_load" not in i] for g in _dg(slot)]

    def issue_stage(slot):
        for grp in dma_groups(slot):
            for ins in grp:
                k.e(ins)

    uid = [0]

    def iteration(slot, issue, vm):
        uid[0] += 1
        u_ = uid[0]
        k.c(f"---- iteration slot {slot}")
        if "deep" in DIAG and vm == 8:
            vm = 24
        if "deeper" in DIAG and vm == 8:
            vm = 56
        k.e(f"s_waitcnt vmcnt({vm}) lgkmcnt(0)")
        if "nobar" not in DIAG:
            k.e("s_barrier")
        pend = dma_groups((slot + 3) % NST) if issue else []
        so = slot * SLOT_LDS
        if "nocompute" in DIAG:
            uid[0] += 1
            if "optB" in DIAG:
                k.e(f"s_cmp_lg_u32 {s(S_G)}, 0")
                k.e(f"s_cbranch_scc1 L_{name}_nc{uid[0]}")
            for g in pend:
                for ins in g:
                    k.e(ins)
            if "optB" in DIAG:
                k.l(f"L_{name}_nc{uid[0]}")
            return
        for ss in range(8):
            k.e(f"ds_read_b128 {v(Kf + 4 * ss, 4)}, {v(aK[ss])} offset:{so}")
        for ss in range(8):
            k.e(f"s_waitcnt lgkmcnt({7 - ss})")
            cc = "0" if ss == 0 else v(S, 16)
            k.e(f"v_mfma_f32_32x32x16_bf16 {v(S, 16)}, {v(Kf + 4 * ss, 4)}, {v(Q + 4 * ss, 4)}, {cc}")
        def vreads(u):
            for d in range(4):
                for q in range(2):
                    k.e(f"ds_read_b64_tr_b16 {v(Vf + 16 * u + 4 * d + 2 * q, 2)}, {v(aV[d])} offset:{so + 4096 * u + 2048 * q}")
        vreads(0)
        k.e("s_nop 5")
        Sx = [S + i for i in range(16)]
        k.e(f"v_max3_f32 {v(t[0])}, {v(Sx[0])}, {v(Sx[1])}, {v(Sx[2])}")
        k.e(f"v_max3_f32 {v(t[1])}, {v(Sx[3])}, {v(Sx[4])}, {v(Sx[5])}")
        k.e(f"v_max3_f32 {v(t[2])}, {v(Sx[6])}, {v(Sx[7])}, {v(Sx[8])}")
        k.e(f"v_max3_f32 {v(t[3])}, {v(Sx[9])}, {v(Sx[10])}, {v(Sx[11])}")
        k.e(f"v_max3_f32 {v(t[0])}, {v(t[0])}, {v(Sx[12])}, {v(Sx[13])}")
        k.e(f"v_max3_f32 {v(t[1])}, {v(t[1])}, {v(Sx[14])}, {v(Sx[15])}")
        k.e(f"v_max3_f32 {v(t[0])}, {v(t[0])}, {v(t[1])}, {v(t[2])}")
        k.e(f"v_max_f32 {v(t[0])}, {v(t[0])}, {v(t[3])}")
        k.e(f"v_mov_b32 {v(t[1])}, {v(t[0])}")
        k.e("s_nop 1")
        k.e(f"v_permlane32_swap_b32 {v(t[0])}, {v(t[1])}")
        k.e(f"v_max_f32 {v(t[0])}, {v(t[0])}, {v(t[1])}")
        k.e(f"v_mul_f32 {v(t[0])}, {s(S_C)}, {v(t[0])}")
        k.e(f"v_sub_f32 {v(t[2])}, {v(t[0])}, {v(vMC)}")
        k.e(f"v_cmp_lt_f32 vcc, {s(S_THR)}, {v(t[2])}")
        k.e(f"s_cbranch_vccz L_{name}_skip{u_}")
        k.c("rescale path (rare)")
        k.e(f"v_max_f32 {v(t[3])}, {v(vMC)}, {v(t[0])}")
        k.e(f"v_sub_f32 {v(t[2])}, {v(vMC)}, {v(t[3])}")
        k.e(f"v_exp_f32 {v(t[2])}, {v(t[2])}")
        k.e(f"v_mov_b32 {v(vMC)}, {v(t[3])}")
        k.e("s_nop 7")
        k.e(f"v_mul_f32 {v(vL)}, {v(vL)}, {v(t[2])}")
        for d in range(4):
            for i in range(16):
                k.e(f"v_mul_f32 {v(O[d] + i)}, {v(O[d] + i)}, {v(t[2])}")
        k.e("s_nop 1")
        k.l(f"L_{name}_skip{u_}")
        k.e("s_waitcnt lgkmcnt(7)")
        vreads(1)
        for i in range(16):
            k.e(f"v_fma_f32 {v(Sx[i])}, {v(Sx[i])}, {s(S_C)}, -{v(vMC)}")
        for i in range(16):
            k.e(f"v_exp_f32 {v(Sx[i])}, {v(Sx[i])}")
        for j in range(8):
            k.e(f"v_cvt_pk_bf16_f32 {v(P + j)}, {v(Sx[2 * j])}, {v(Sx[2 * j + 1])}")
        k.e(f"v_add_f32 {v(t[0])}, {v(Sx[0])}, {v(Sx[1])}")
        k.e(f"v_add_f32 {v(t[1])}, {v(Sx[2])}, {v(Sx[3])}")
        k.e(f"v_add_f32 {v(t[2])}, {v(Sx[4])}, {v(Sx[5])}")
        k.e(f"v_add_f32 {v(t[3])}, {v(Sx[6])}, {v(Sx[7])}")
        k.e(f"v_add_f32 {v(t[0])}, {v(t[0])}, {v(Sx[8])}")
        k.e(f"v_add_f32 {v(t[1])}, {v(t[1])}, {v(Sx[9])}")
        k.e(f"v_add_f32 {v(t[2])}, {v(t[2])}, {v(Sx[10])}")
        k.e(f"v_add_f32 {v(t[3])}, {v(t[3])}, {v(Sx[11])}")
        k.e(f"v_add_f32 {v(t[0])}, {v(t[0])}, {v(Sx[12])}")
        k.e(f"v_add_f32 {v(t[1])}, {v(t[1])}, {v(Sx[13])}")
        k.e(f"v_add_f32 {v(t[2])}, {v(t[2])}, {v(Sx[14])}")
        k.e(f"v_add_f32 {v(t[3])}, {v(t[3])}, {v(Sx[15])}")
        k.e(f"v_add_f32 {v(t[0])}, {v(t[0])}, {v(t[1])}")
        k.e(f"v_add_f32 {v(t[2])}, {v(t[2])}, {v(t[3])}")
        k.e(f"v_add_f32 {v(t[0])}, {v(t[0])}, {v(t[2])}")
        k.e(f"v_add_f32 {v(vL)}, {v(vL)}, {v(t[0])}")
        k.e("s_waitcnt lgkmcnt(0)")
        for u in range(2):
            for d in range(4):
                k.e(f"v_mfma_f32_32x32x16_bf16 {v(O[d], 16)}, {v(Vf + 16 * u + 4 * d, 4)}, {v(P + 4 * u, 4)}, {v(O[d], 16)}")
                if d % 2 == 1 and pend:
                    for ins in pend.pop(0):
                        k.e(ins)

    k.c("prologue: stages 0..2")
    for st in range(3):
        issue_stage(st)
    nblocks = NITER // NST - 1
    k.e(f"s_mov_b32 {s(S_LOOP)}, {nblocks}")
    k.l(f"L_{name}_loop")
    for slot in range(NST):
        iteration(slot, True, 8)
    k.e(f"s_sub_u32 {s(S_LOOP)}, {s(S_LOOP)}, 1")
    k.e(f"s_cmp_lg_u32 {s(S_LOOP)}, 0")
    k.e(f"s_cbranch_scc1 L_{name}_loop")
    k.c("final block")
    iteration(0, True, 8)
    iteration(1, False, 8)
    iteration(2, False, 4)
    iteration(3, False, 0)

    k.c("epilogue: combine the two key halves")
    k.e("s_nop 15")
    k.e(f"v_mov_b32 {v(t[1])}, {v(vL)}")
    k.e("s_nop 1")
    k.e(f"v_permlane32_swap_b32 {v(vL)}, {v(t[1])}")
    k.e(f"v_add_f32 {v(vL)}, {v(vL)}, {v(t[1])}")
    k.e("s_barrier")
    k.e(f"s_lshl_b32 {s(S_T0)}, {s(S_HW)}, 14")
    k.e(f"v_lshlrev_b32 {v(t[0])}, 4, {v(vLane)}")
    k.e(f"v_add_u32 {v(t[0])}, {s(S_T0)}, {v(t[0])}")
    k.e(f"s_lshl_b32 {s(S_T0)}, {s(S_HW)}, 9")
    k.e(f"s_add_u32 {s(S_T0)}, {s(S_T0)}, 65536")
    k.e(f"v_lshlrev_b32 {v(t[1])}, 3, {v(vLane)}")
    k.e(f"v_add_u32 {v(t[1])}, {s(S_T0)}, {v(t[1])}")
    k.e(f"s_cmp_eq_u32 {s(S_G)}, 0")
    k.e(f"s_cbranch_scc1 L_{name}_xwait")
    for d in range(4):
        for qd in range(4):
            k.e(f"ds_write_b128 {v(t[0])}, {v(O[d] + 4 * qd, 4)} offset:{(4 * d + qd) * 1024}")
    k.e(f"v_mov_b32 {v(tp)}, {v(vMC)}")
    k.e(f"v_mov_b32 {v(tp + 1)}, {v(vL)}")
    k.e(f"ds_write_b64 {v(t[1])}, {v(tp, 2)}")
    k.e("s_waitcnt lgkmcnt(0)")
    k.l(f"L_{name}_xwait")
    k.e("s_barrier")
    k.e(f"s_cmp_lg_u32 {s(S_G)}, 0")
    k.e(f"s_cbranch_scc1 L_{name}_end")
    def part(d, i):
        return (Kf + 16 * d + i) if d < 2 else (Vf + 16 * (d - 2) + i)
    k.e(f"ds_read_b64 {v(tp, 2)}, {v(t[1])}")
    for d in range(2):
        for qd in range(4):
            k.e(f"ds_read_b128 {v(part(d, 4 * qd), 4)}, {v(t[0])} offset:{(4 * d + qd) * 1024}")
    k.e("s_waitcnt lgkmcnt(8)")
    k.e(f"v_max_f32 {v(t[4])}, {v(vMC)}, {v(tp)}")
    k.e(f"v_sub_f32 {v(t[5])}, {v(vMC)}, {v(t[4])}")
    k.e(f"v_sub_f32 {v(t[6])}, {v(tp)}, {v(t[4])}")
    k.e(f"v_exp_f32 {v(t[5])}, {v(t[5])}")
    k.e(f"v_exp_f32 {v(t[6])}, {v(t[6])}")
    k.e("s_nop 1")
    k.e(f"v_mul_f32 {v(t[4])}, {v(t[5])}, {v(vL)}")
    k.e(f"v_fmac_f32 {v(t[4])}, {v(t[6])}, {v(tp + 1)}")
    k.e(f"v_rcp_f32 {v(t[4])}, {v(t[4])}")
    k.e("s_nop 1")
    k.e(f"v_mul_f32 {v(t[5])}, {v(t[5])}, {v(t[4])}")
    k.e(f"v_mul_f32 {v(t[6])}, {v(t[6])}, {v(t[4])}")
    k.e("s_waitcnt lgkmcnt(0)")
    for d in range(2, 4):
        for qd in range(4):
            k.e(f"ds_read_b128 {v(part(d, 4 * qd), 4)}, {v(t[0])} offset:{(4 * d + qd) * 1024}")
    for dd in range(4):
        if dd == 2:
            k.e("s_waitcnt lgkmcnt(0)")
        for i in range(16):
            k.e(f"v_mul_f32 {v(O[dd] + i)}, {v(O[dd] + i)}, {v(t[5])}")
            k.e(f"v_fmac_f32 {v(O[dd] + i)}, {v(part(dd, i))}, {v(t[6])}")
    si = 0
    for d in range(4):
        for gp in (0, 2):
            e0 = Kf + 4 * si if si < 8 else Vf
            si += 1
            a = O[d] + 4 * gp
            for i in range(4):
                k.e(f"v_cvt_pk_bf16_f32 {v(e0 + i)}, {v(a + 2 * i)}, {v(a + 2 * i + 1)}")
            k.e("s_nop 1")
            k.e(f"v_permlane32_swap_b32 {v(e0)}, {v(e0 + 2)}")
            k.e(f"v_permlane32_swap_b32 {v(e0 + 1)}, {v(e0 + 3)}")
            k.e("s_nop 1")
            k.e(f"buffer_store_dwordx4 {v(e0, 4)}, {v(t[7])}, {s(SRD_O, 4)}, 0 offen offset:{64 * d + 16 * gp}")
    if "clock" in DIAG:
        k.e("s_waitcnt vmcnt(0)")
        k.e("s_memtime s[54:55]")
        k.e("s_memrealtime s[56:57]")
        k.e("s_waitcnt lgkmcnt(0)")
        k.e(f"s_lshl_b32 s60, s2, 3")
        k.e(f"s_add_u32 s60, s60, {s(S_WAVE)}")
        k.e(f"s_cmp_lt_u32 s60, 8")
        k.e(f"s_cbranch_scc0 L_{name}_end")
        k.e("s_mov_b32 s44, s58")
        k.e("s_mov_b32 s45, s59")
        k.e("s_mov_b32 s46, 256")
        k.e("s_mov_b32 s47, 0x00020000")
        for i in range(8):
            k.e(f"v_mov_b32 {v(t[0] + 0)}, s{50 + i}") if False else None
        k.e(f"s_lshl_b32 s60, s60, 5")
        k.e(f"v_mov_b32 v1, s60")
        for i in range(8):
            k.e(f"v_mov_b32 v{2 + i}, s{50 + i}")
        k.e("v_cmp_eq_u32 vcc, 0, v0") if False else None
        k.e(f"v_cmp_eq_u32 vcc, 0, {v(vLane)}")
        k.e("s_and_saveexec_b64 s[62:63], vcc")
        k.e("buffer_store_dwordx4 v[2:5], v1, s[44:47], 0 offen")
        k.e("buffer_store_dwordx4 v[6:9], v1, s[44:47], 0 offen offset:16")
        k.e("s_waitcnt vmcnt(0)")
    k.l(f"L_{name}_end")
    k.e("s_endpgm")
    return k, LDS_BYTES, NWG


def make_attn():
    k, lds, nwg = gen_attn("gqa_attn_kernel")
    return (k, (nwg, 1, 1), (512, 1, 1), lds)
```

```python
import math
import os
import struct
from gen import *

DIAG = os.environ.get("ATTN_DIAG", "")


def f32bits(x):
    return struct.unpack("<I", struct.pack("<f", x))[0]


NS = 4
NSTAGES = 32
GROUP_LDS = 65536
KSLOT = 8192
V_REGION = NS * KSLOT
LDS_BYTES = 2 * GROUP_LDS


def merge(items, extras):
    extras = sorted(extras, key=lambda x: x[0])
    out = []
    ei = 0
    for idx, item in enumerate(items):
        while ei < len(extras) and extras[ei][0] <= idx:
            out += extras[ei][1]
            ei += 1
        out += item
    while ei < len(extras):
        out += extras[ei][1]
        ei += 1
    return out


def gen_attn(name):
    k = Kern(name)
    NWG = 256
    S_WS, S_K, S_V = 4, 6, 8
    SRD_Q, SRD_K, SRD_V, SRD_O = 12, 16, 20, 24
    S_WAVE, S_G, S_HW, S_LDSW, S_KOFF, S_VOFF, S_P, S_QH, S_C, S_THR, S_LOOP = 28, 29, 30, 31, 32, 33, 34, 35, 36, 37, 38
    S_T0, S_T1, S_T2, S_HQ = 39, 40, 41, 42
    S_WO = 10
    SRD_WO = 44
    k.ns = 48

    va = VAlloc()
    vLane = va()
    t = [va() for _ in range(8)]
    vMC = va(2, 2)
    vL = va()
    tp = va(2, 2)
    tq = va(8, 2)
    vDK = [va(), va()]
    vDV = [va(), va()]
    aK = [va() for _ in range(8)]
    aV = [va() for _ in range(4)]
    P = va(8, 4)
    Q = va(32, 4)
    S2 = [va(16, 16), va(16, 16)]
    O = [va(16, 16) for _ in range(4)]
    Kf = va(32, 4)
    Vf = va(32, 4)
    k.nv = va.n
    assert k.nv <= 256, k.nv

    scale_c = math.log2(math.e) / math.sqrt(DH)

    k.e(f"s_cmp_ge_u32 s2, {NWG}")
    k.e(f"s_cbranch_scc1 L_{name}_end")
    if "clock" in DIAG:
        k.ns = 80
        k.e("s_memrealtime s[68:69]")
        k.e(f"s_load_dwordx2 s[58:59], s[0:1], {KA_DBG}")
    k.e(f"s_load_dwordx2 {s(S_WS, 2)}, s[0:1], {KA_WS}")
    k.e(f"s_load_dwordx2 {s(S_K, 2)}, s[0:1], {KA_K}")
    k.e(f"s_load_dwordx2 {s(S_V, 2)}, s[0:1], {KA_V}")
    k.e(f"s_load_dwordx2 {s(S_WO, 2)}, s[0:1], {KA_WO}")
    k.e(f"v_lshrrev_b32 {v(t[0])}, 6, v0")
    k.e(f"v_and_b32 {v(vLane)}, 63, v0")
    k.e("s_nop 1")
    k.e(f"v_readfirstlane_b32 {s(S_WAVE)}, {v(t[0])}")
    k.e("s_nop 3")
    k.e(f"s_lshr_b32 {s(S_G)}, {s(S_WAVE)}, 2")
    k.e(f"s_and_b32 {s(S_HW)}, {s(S_WAVE)}, 3")
    k.e(f"s_lshr_b32 {s(S_P)}, s2, 4")
    k.e(f"s_lshl_b32 {s(S_P)}, {s(S_P)}, 3")
    k.e(f"s_and_b32 {s(S_T0)}, s2, 7")
    k.e(f"s_add_u32 {s(S_P)}, {s(S_P)}, {s(S_T0)}")
    k.e(f"s_lshr_b32 {s(S_QH)}, s2, 3")
    k.e(f"s_and_b32 {s(S_QH)}, {s(S_QH)}, 1")
    k.e(f"s_lshl_b32 {s(S_LDSW)}, {s(S_G)}, 16")
    k.e(f"s_lshl_b32 {s(S_T0)}, {s(S_HW)}, 10")
    k.e(f"s_add_u32 {s(S_LDSW)}, {s(S_LDSW)}, {s(S_T0)}")
    k.e(f"s_lshl_b32 {s(S_KOFF)}, {s(S_P)}, 19")
    k.e(f"s_lshl_b32 {s(S_T0)}, {s(S_G)}, 18")
    k.e(f"s_add_u32 {s(S_KOFF)}, {s(S_KOFF)}, {s(S_T0)}")
    k.e(f"s_mov_b32 {s(S_VOFF)}, {s(S_KOFF)}")
    k.e(f"s_and_b32 {s(S_HQ)}, {s(S_P)}, 3")
    k.e(f"s_lshl_b32 {s(S_HQ)}, {s(S_HQ)}, 3")
    k.e(f"s_lshl_b32 {s(S_T0)}, {s(S_QH)}, 2")
    k.e(f"s_add_u32 {s(S_HQ)}, {s(S_HQ)}, {s(S_T0)}")
    k.e(f"s_add_u32 {s(S_HQ)}, {s(S_HQ)}, {s(S_HW)}")
    k.e(f"s_mov_b32 {s(S_C)}, {f32bits(scale_c):#x}")
    k.e(f"s_mov_b32 {s(S_THR)}, {f32bits(8.0):#x}")
    k.e("s_waitcnt lgkmcnt(0)")
    emit_srd(k, SRD_Q, S_WS, WS_Q_OFF, NTOK * HQ * DH * 2)
    emit_srd(k, SRD_K, S_K, 0, B * HKV * SK * DH * 2)
    emit_srd(k, SRD_V, S_V, 0, B * HKV * SK * DH * 2)
    emit_srd(k, SRD_O, S_WS, WS_O_OFF, NTOK * HQ * DH * 2)
    emit_srd(k, SRD_WO, S_WO, 0, HQ * DH * D * 2)

    k.c("Q fragment loads")
    k.e(f"v_and_b32 {v(t[0])}, 31, {v(vLane)}")
    k.e(f"s_lshr_b32 {s(S_T0)}, {s(S_P)}, 2")
    k.e(f"s_lshl_b32 {s(S_T0)}, {s(S_T0)}, 5")
    k.e(f"v_add_u32 {v(t[0])}, {s(S_T0)}, {v(t[0])}")
    k.e(f"v_lshlrev_b32 {v(t[0])}, 13, {v(t[0])}")
    k.e(f"v_lshrrev_b32 {v(t[1])}, 5, {v(vLane)}")
    k.e(f"v_lshl_add_u32 {v(t[0])}, {v(t[1])}, 4, {v(t[0])}")
    k.e(f"s_lshl_b32 {s(S_T0)}, {s(S_HQ)}, 8")
    k.e(f"v_add_u32 {v(t[7])}, {s(S_T0)}, {v(t[0])}")
    for ss in range(8):
        k.e(f"buffer_load_dwordx4 {v(Q + 4 * ss, 4)}, {v(t[7])}, {s(SRD_Q, 4)}, 0 offen offset:{32 * ss}")

    k.c("DMA voffsets")
    k.e(f"v_lshrrev_b32 {v(t[0])}, 4, {v(vLane)}")
    k.e(f"v_and_b32 {v(t[1])}, 15, {v(vLane)}")
    k.e(f"s_lshl_b32 {s(S_T0)}, {s(S_HW)}, 2")
    k.e(f"v_add_u32 {v(t[2])}, {s(S_T0)}, {v(t[0])}")
    k.e(f"v_xor_b32 {v(t[3])}, {v(t[1])}, {v(t[2])}")
    k.e(f"v_lshlrev_b32 {v(t[4])}, 8, {v(t[2])}")
    k.e(f"v_lshl_add_u32 {v(vDK[0])}, {v(t[3])}, 4, {v(t[4])}")
    k.e(f"v_add_u32 {v(vDK[1])}, 4096, {v(vDK[0])}")
    k.e(f"v_lshlrev_b32 {v(t[3])}, 2, {v(t[0])}")
    k.e(f"v_xor_b32 {v(t[3])}, {v(t[1])}, {v(t[3])}")
    k.e(f"v_lshl_add_u32 {v(vDV[0])}, {v(t[3])}, 4, {v(t[4])}")
    k.e(f"v_add_u32 {v(vDV[1])}, 4096, {v(vDV[0])}")

    k.c("K fragment LDS addresses")
    k.e(f"v_and_b32 {v(t[0])}, 31, {v(vLane)}")
    k.e(f"v_lshrrev_b32 {v(t[1])}, 5, {v(vLane)}")
    k.e(f"v_and_b32 {v(t[2])}, 15, {v(t[0])}")
    k.e(f"v_xor_b32 {v(t[1])}, {v(t[1])}, {v(t[2])}")
    k.e(f"v_lshlrev_b32 {v(t[0])}, 8, {v(t[0])}")
    k.e(f"v_lshl_add_u32 {v(t[0])}, {v(t[1])}, 4, {v(t[0])}")
    k.e(f"s_lshl_b32 {s(S_T0)}, {s(S_G)}, 16")
    k.e(f"v_add_u32 {v(aK[0])}, {s(S_T0)}, {v(t[0])}")
    for ss in range(1, 8):
        k.e(f"v_xor_b32 {v(aK[ss])}, {ss << 5}, {v(aK[0])}")

    k.c("V fragment LDS addresses")
    k.e(f"v_and_b32 {v(t[0])}, 15, {v(vLane)}")
    k.e(f"v_lshrrev_b32 {v(t[1])}, 2, {v(t[0])}")
    k.e(f"v_and_b32 {v(t[0])}, 3, {v(t[0])}")
    k.e(f"v_lshrrev_b32 {v(t[2])}, 5, {v(vLane)}")
    k.e(f"v_lshl_add_u32 {v(t[2])}, {v(t[2])}, 2, {v(t[1])}")
    k.e(f"v_lshlrev_b32 {v(t[2])}, 8, {v(t[2])}")
    k.e(f"v_lshl_add_u32 {v(t[2])}, {v(t[0])}, 3, {v(t[2])}")
    k.e(f"v_lshrrev_b32 {v(t[0])}, 4, {v(vLane)}")
    k.e(f"v_and_b32 {v(t[0])}, 1, {v(t[0])}")
    k.e(f"v_lshl_add_u32 {v(t[2])}, {v(t[0])}, 5, {v(t[2])}")
    k.e(f"v_lshl_add_u32 {v(t[2])}, {v(t[1])}, 6, {v(t[2])}")
    k.e(f"s_lshl_b32 {s(S_T0)}, {s(S_G)}, 16")
    k.e(f"s_add_u32 {s(S_T0)}, {s(S_T0)}, {V_REGION}")
    k.e(f"v_add_u32 {v(aV[0])}, {s(S_T0)}, {v(t[2])}")
    for d in range(1, 4):
        k.e(f"v_xor_b32 {v(aV[d])}, {d << 6}, {v(aV[0])}")

    k.e(f"v_mov_b32 {v(vMC)}, 0xff800000")
    k.e(f"v_mov_b32 {v(vL)}, 0")
    for d in range(4):
        for i in range(16):
            k.e(f"v_mov_b32 {v(O[d] + i)}, 0")

    vmq = ["Q"] * 8

    def vm_count(needed):
        last = -1
        for idx, tg in enumerate(vmq):
            if tg in needed:
                last = idx
        n = len(vmq) - 1 - last
        del vmq[:last + 1]
        assert n <= 63
        return n

    NTF = "" if "nont" in DIAG else " nt"

    def dma_k(j):
        slot = j % NS
        g = []
        for jj in range(2):
            g.append([f"s_add_u32 m0, {s(S_LDSW)}, {slot * KSLOT + 4096 * jj}",
                      "s_nop 0",
                      f"buffer_load_dwordx4 {v(vDK[jj])}, {s(SRD_K, 4)}, {s(S_KOFF)} offen{NTF} lds"])
            vmq.append(f"K{j}")
        g[-1].append(f"s_add_u32 {s(S_KOFF)}, {s(S_KOFF)}, {KSLOT}")
        return g

    def dma_v(j):
        slot = j % NS
        g = []
        for jj in range(2):
            g.append([f"s_add_u32 m0, {s(S_LDSW)}, {V_REGION + slot * KSLOT + 4096 * jj}",
                      "s_nop 0",
                      f"buffer_load_dwordx4 {v(vDV[jj])}, {s(SRD_V, 4)}, {s(S_VOFF)} offen{NTF} lds"])
            vmq.append(f"V{j}")
        g[-1].append(f"s_add_u32 {s(S_VOFF)}, {s(S_VOFF)}, {KSLOT}")
        return g

    uid = [0]
    vmlog = {}

    def softmax_items(Sx):
        uid[0] += 1
        u_ = uid[0]
        it = []
        a = lambda *x: it.append(list(x))
        a(f"v_max3_f32 {v(t[0])}, {v(Sx[0])}, {v(Sx[1])}, {v(Sx[2])}")
        a(f"v_max3_f32 {v(t[1])}, {v(Sx[3])}, {v(Sx[4])}, {v(Sx[5])}")
        a(f"v_max3_f32 {v(t[2])}, {v(Sx[6])}, {v(Sx[7])}, {v(Sx[8])}")
        a(f"v_max3_f32 {v(t[3])}, {v(Sx[9])}, {v(Sx[10])}, {v(Sx[11])}")
        a(f"v_max3_f32 {v(t[0])}, {v(t[0])}, {v(Sx[12])}, {v(Sx[13])}")
        a(f"v_max3_f32 {v(t[1])}, {v(t[1])}, {v(Sx[14])}, {v(Sx[15])}")
        a(f"v_max3_f32 {v(t[0])}, {v(t[0])}, {v(t[1])}, {v(t[2])}")
        a(f"v_max_f32 {v(t[0])}, {v(t[0])}, {v(t[3])}")
        a(f"v_mov_b32 {v(t[1])}, {v(t[0])}", "s_nop 1", f"v_permlane32_swap_b32 {v(t[0])}, {v(t[1])}")
        a(f"v_max_f32 {v(t[0])}, {v(t[0])}, {v(t[1])}")
        a(f"v_mul_f32 {v(t[0])}, {s(S_C)}, {v(t[0])}")
        a(f"v_sub_f32 {v(t[2])}, {v(t[0])}, {v(vMC)}")
        blk = [f"v_cmp_lt_f32 vcc, {s(S_THR)}, {v(t[2])}",
               f"s_cbranch_vccz L_{name}_skip{u_}",
               f"v_max_f32 {v(t[3])}, {v(vMC)}, {v(t[0])}",
               f"v_sub_f32 {v(t[2])}, {v(vMC)}, {v(t[3])}",
               f"v_exp_f32 {v(t[2])}, {v(t[2])}",
               f"v_mov_b32 {v(vMC)}, {v(t[3])}",
               "s_nop 7",
               f"v_mul_f32 {v(vL)}, {v(vL)}, {v(t[2])}"]
        for d in range(4):
            for i in range(16):
                blk.append(f"v_mul_f32 {v(O[d] + i)}, {v(O[d] + i)}, {v(t[2])}")
        blk.append("s_nop 1")
        blk.append(f"L_{name}_skip{u_}:")
        a(*blk)
        if "pk" not in DIAG.split(","):
            for i in range(16):
                a(f"v_fma_f32 {v(Sx[i])}, {v(Sx[i])}, {s(S_C)}, -{v(vMC)}")
        else:
            assert S_C % 2 == 0 and vMC % 2 == 0 and Sx[0] % 2 == 0
            for i in range(0, 16, 2):
                a(f"v_pk_fma_f32 {v(Sx[i], 2)}, {v(Sx[i], 2)}, {s(S_C, 2)}, {v(vMC, 2)} op_sel_hi:[1,0,0] neg_lo:[0,0,1] neg_hi:[0,0,1]")
        for i in range(16):
            a(f"v_exp_f32 {v(Sx[i])}, {v(Sx[i])}")
        for j in range(8):
            a(f"v_cvt_pk_bf16_f32 {v(P + j)}, {v(Sx[2 * j])}, {v(Sx[2 * j + 1])}")
        if "pk" not in DIAG.split(","):
            a(f"v_add_f32 {v(t[0])}, {v(Sx[0])}, {v(Sx[1])}")
            a(f"v_add_f32 {v(t[1])}, {v(Sx[2])}, {v(Sx[3])}")
            a(f"v_add_f32 {v(t[2])}, {v(Sx[4])}, {v(Sx[5])}")
            a(f"v_add_f32 {v(t[3])}, {v(Sx[6])}, {v(Sx[7])}")
            a(f"v_add_f32 {v(t[0])}, {v(t[0])}, {v(Sx[8])}")
            a(f"v_add_f32 {v(t[1])}, {v(t[1])}, {v(Sx[9])}")
            a(f"v_add_f32 {v(t[2])}, {v(t[2])}, {v(Sx[10])}")
            a(f"v_add_f32 {v(t[3])}, {v(t[3])}, {v(Sx[11])}")
            a(f"v_add_f32 {v(t[0])}, {v(t[0])}, {v(Sx[12])}")
            a(f"v_add_f32 {v(t[1])}, {v(t[1])}, {v(Sx[13])}")
            a(f"v_add_f32 {v(t[2])}, {v(t[2])}, {v(Sx[14])}")
            a(f"v_add_f32 {v(t[3])}, {v(t[3])}, {v(Sx[15])}")
            a(f"v_add_f32 {v(t[0])}, {v(t[0])}, {v(t[1])}")
            a(f"v_add_f32 {v(t[2])}, {v(t[2])}, {v(t[3])}")
            a(f"v_add_f32 {v(t[0])}, {v(t[0])}, {v(t[2])}")
            a(f"v_add_f32 {v(vL)}, {v(vL)}, {v(t[0])}")
        else:
            a(f"v_pk_add_f32 {v(tq, 2)}, {v(Sx[0], 2)}, {v(Sx[2], 2)}")
            a(f"v_pk_add_f32 {v(tq + 2, 2)}, {v(Sx[4], 2)}, {v(Sx[6], 2)}")
            a(f"v_pk_add_f32 {v(tq + 4, 2)}, {v(Sx[8], 2)}, {v(Sx[10], 2)}")
            a(f"v_pk_add_f32 {v(tq + 6, 2)}, {v(Sx[12], 2)}, {v(Sx[14], 2)}")
            a(f"v_pk_add_f32 {v(tq, 2)}, {v(tq, 2)}, {v(tq + 2, 2)}")
            a(f"v_pk_add_f32 {v(tq + 4, 2)}, {v(tq + 4, 2)}, {v(tq + 6, 2)}")
            a(f"v_pk_add_f32 {v(tq, 2)}, {v(tq, 2)}, {v(tq + 4, 2)}")
            a(f"v_add_f32 {v(t[0])}, {v(tq)}, {v(tq + 1)}")
            a(f"v_add_f32 {v(vL)}, {v(vL)}, {v(t[0])}")
        return it

    INLOOP = [False]

    def emit_lines(lines):
        for ln in lines:
            if "nodma" in DIAG and "offen" in ln and ln.rstrip().endswith("lds"):
                continue
            if INLOOP[0]:
                if "nolds" in DIAG and ln.startswith("ds_read"):
                    continue
                if "nomfma" in DIAG and ln.startswith("v_mfma"):
                    continue
                if "novalu" in DIAG and ln.startswith("v_") and not ln.startswith("v_mfma"):
                    continue
                if "novalu" in DIAG and ln.startswith("s_cbranch_vccz"):
                    continue
                if "noexp" in DIAG and ln.startswith("v_exp"):
                    continue
                if "nobar" in DIAG and ln.startswith("s_barrier"):
                    continue
            if ln.endswith(":"):
                k.lines.append(ln)
            else:
                k.e(ln)

    def iteration(i):
        do_qk = 0 <= i + 1 < NSTAGES
        do_sm = 0 <= i < NSTAGES
        do_kread = 0 <= i + 2 < NSTAGES
        k.c(f"---- iteration {i}")
        need = set()
        if do_kread:
            need.add(f"K{i + 2}")
        if do_sm:
            need.add(f"V{i}")
        if i == -1:
            need.add("Q")
        vm = vm_count(need)
        vmlog[i] = vm
        k.e(f"s_waitcnt vmcnt({vm}) lgkmcnt(0)")
        emit_lines(["s_barrier"])
        qk = []
        if do_qk:
            Sn = S2[(i + 1) & 1]
            for ss in range(8):
                cc = "0" if ss == 0 else v(Sn, 16)
                qk.append([f"v_mfma_f32_32x32x16_bf16 {v(Sn, 16)}, {v(Kf + 4 * ss, 4)}, {v(Q + 4 * ss, 4)}, {cc}"])
        vr = []
        if do_sm:
            so = (i % NS) * KSLOT
            n = 0
            for u in range(2):
                for d in range(4):
                    for q in range(2):
                        ln = []
                        if n == 8:
                            ln.append("s_waitcnt lgkmcnt(7)")
                        ln.append(f"ds_read_b64_tr_b16 {v(Vf + 16 * u + 4 * d + 2 * q, 2)}, {v(aV[d])} offset:{so + 4096 * u + 2048 * q}")
                        vr.append(ln)
                        n += 1
        if do_sm:
            items = softmax_items([S2[i & 1] + j for j in range(16)])
            nI = len(items)
            extras = []
            for m, x in enumerate(qk):
                extras.append((m * nI // 8, x))
            for r, x in enumerate(vr):
                extras.append(((r * nI) // 16 + 1, x))
            emit_lines(merge(items, extras))
        else:
            for x in qk:
                emit_lines(x)
        pv = []
        if do_sm:
            k.e("s_waitcnt lgkmcnt(0)")
            for u in range(2):
                for d in range(4):
                    pv.append([f"v_mfma_f32_32x32x16_bf16 {v(O[d], 16)}, {v(Vf + 16 * u + 4 * d, 4)}, {v(P + 4 * u, 4)}, {v(O[d], 16)}"])
        kr = []
        if do_kread:
            ko = ((i + 2) % NS) * KSLOT
            for ss in range(8):
                kr.append([f"ds_read_b128 {v(Kf + 4 * ss, 4)}, {v(aK[ss])} offset:{ko}"])
        dm = []
        if 0 <= i + 1 + NS < NSTAGES:
            dm += dma_k(i + 1 + NS)
        if 0 <= i - 1 + NS < NSTAGES:
            dm += dma_v(i - 1 + NS)
        seq = []
        for m in range(8):
            if m < 4:
                seq += kr[2 * m: 2 * m + 2]
            if m < len(pv):
                seq.append(pv[m])
            if m >= 4 and dm:
                seq.append(dm.pop(0))
        seq += kr[8:]
        seq += dm
        for x in seq:
            emit_lines(x)

    k.c("initial DMAs")
    for j in range(3):
        for g in dma_k(j):
            emit_lines(g)
    for g in dma_v(0):
        emit_lines(g)
    if "clock" in DIAG:
        k.e("s_waitcnt vmcnt(0) lgkmcnt(0)")
        k.e("s_barrier")
        k.e("s_memtime s[50:51]")
        k.e("s_memrealtime s[52:53]")
    INLOOP[0] = True
    iteration(-2)
    iteration(-1)
    LOOP_ITERS = 24
    k.e(f"s_mov_b32 {s(S_LOOP)}, {LOOP_ITERS // 4}")
    k.l(f"L_{name}_loop")
    snap = None
    for i in range(4):
        iteration(i)
    saved_lines = k.lines
    for i in range(4, LOOP_ITERS):
        k.lines = []
        iteration(i)
    k.lines = saved_lines
    for i in range(4, LOOP_ITERS):
        assert vmlog[i] == vmlog[i % 4], (i, vmlog)
    k.e(f"s_sub_u32 {s(S_LOOP)}, {s(S_LOOP)}, 1")
    k.e(f"s_cmp_lg_u32 {s(S_LOOP)}, 0")
    k.e(f"s_cbranch_scc1 L_{name}_loop")
    k.c("peeled tail")
    for i in range(LOOP_ITERS, NSTAGES):
        iteration(i)

    INLOOP[0] = False
    if "clock" in DIAG:
        k.e("s_nop 15")
        k.e("s_memtime s[54:55]")
        k.e("s_memrealtime s[56:57]")
        k.e("s_waitcnt lgkmcnt(0)")
    k.c("epilogue: combine the two key halves")
    k.e("s_nop 15")
    k.e(f"v_mov_b32 {v(t[1])}, {v(vL)}")
    k.e("s_nop 1")
    k.e(f"v_permlane32_swap_b32 {v(vL)}, {v(t[1])}")
    k.e(f"v_add_f32 {v(vL)}, {v(vL)}, {v(t[1])}")
    k.e("s_waitcnt vmcnt(0) lgkmcnt(0)")
    k.e("s_barrier")
    if "nopf" not in DIAG:
        k.c("prefetch this WG's 32 KiB slice of wo (pulls it into the memory-side cache for the next kernel)")
        k.e(f"s_lshl_b32 {s(S_T0)}, s2, 3")
        k.e(f"s_add_u32 {s(S_T0)}, {s(S_T0)}, {s(S_WAVE)}")
        k.e(f"s_lshl_b32 {s(S_T0)}, {s(S_T0)}, 12")
        k.e(f"v_lshlrev_b32 {v(t[2])}, 4, {v(vLane)}")
        k.e(f"v_add_u32 {v(t[2])}, {s(S_T0)}, {v(t[2])}")
        for j in range(4):
            k.e(f"buffer_load_dwordx4 {v(S2[0] + 4 * j, 4)}, {v(t[2])}, {s(SRD_WO, 4)}, 0 offen offset:{1024 * j}")
    k.e(f"s_lshl_b32 {s(S_T0)}, {s(S_HW)}, 14")
    k.e(f"v_lshlrev_b32 {v(t[0])}, 4, {v(vLane)}")
    k.e(f"v_add_u32 {v(t[0])}, {s(S_T0)}, {v(t[0])}")
    k.e(f"s_lshl_b32 {s(S_T0)}, {s(S_HW)}, 9")
    k.e(f"s_add_u32 {s(S_T0)}, {s(S_T0)}, 65536")
    k.e(f"v_lshlrev_b32 {v(t[1])}, 3, {v(vLane)}")
    k.e(f"v_add_u32 {v(t[1])}, {s(S_T0)}, {v(t[1])}")
    k.e(f"s_cmp_eq_u32 {s(S_G)}, 0")
    k.e(f"s_cbranch_scc1 L_{name}_xwait")
    for d in range(4):
        for qd in range(4):
            k.e(f"ds_write_b128 {v(t[0])}, {v(O[d] + 4 * qd, 4)} offset:{(4 * d + qd) * 1024}")
    k.e(f"v_mov_b32 {v(tp)}, {v(vMC)}")
    k.e(f"v_mov_b32 {v(tp + 1)}, {v(vL)}")
    k.e(f"ds_write_b64 {v(t[1])}, {v(tp, 2)}")
    k.e("s_waitcnt lgkmcnt(0)")
    k.l(f"L_{name}_xwait")
    k.e("s_barrier")
    k.e(f"s_cmp_lg_u32 {s(S_G)}, 0")
    k.e(f"s_cbranch_scc1 L_{name}_end")

    def part(d, i):
        return (Kf + 16 * d + i) if d < 2 else (Vf + 16 * (d - 2) + i)

    k.e(f"ds_read_b64 {v(tp, 2)}, {v(t[1])}")
    for d in range(2):
        for qd in range(4):
            k.e(f"ds_read_b128 {v(part(d, 4 * qd), 4)}, {v(t[0])} offset:{(4 * d + qd) * 1024}")
    k.e("s_waitcnt lgkmcnt(8)")
    k.e(f"v_max_f32 {v(t[4])}, {v(vMC)}, {v(tp)}")
    k.e(f"v_sub_f32 {v(t[5])}, {v(vMC)}, {v(t[4])}")
    k.e(f"v_sub_f32 {v(t[6])}, {v(tp)}, {v(t[4])}")
    k.e(f"v_exp_f32 {v(t[5])}, {v(t[5])}")
    k.e(f"v_exp_f32 {v(t[6])}, {v(t[6])}")
    k.e("s_nop 1")
    k.e(f"v_mul_f32 {v(t[4])}, {v(t[5])}, {v(vL)}")
    k.e(f"v_fmac_f32 {v(t[4])}, {v(t[6])}, {v(tp + 1)}")
    k.e(f"v_rcp_f32 {v(t[4])}, {v(t[4])}")
    k.e("s_nop 1")
    k.e(f"v_mul_f32 {v(t[5])}, {v(t[5])}, {v(t[4])}")
    k.e(f"v_mul_f32 {v(t[6])}, {v(t[6])}, {v(t[4])}")
    k.e("s_waitcnt lgkmcnt(0)")
    for d in range(2, 4):
        for qd in range(4):
            k.e(f"ds_read_b128 {v(part(d, 4 * qd), 4)}, {v(t[0])} offset:{(4 * d + qd) * 1024}")
    for dd in range(4):
        if dd == 2:
            k.e("s_waitcnt lgkmcnt(0)")
        for i in range(16):
            k.e(f"v_mul_f32 {v(O[dd] + i)}, {v(O[dd] + i)}, {v(t[5])}")
            k.e(f"v_fmac_f32 {v(O[dd] + i)}, {v(part(dd, i))}, {v(t[6])}")
    si = 0
    for d in range(4):
        for gp in (0, 2):
            e0 = Kf + 4 * si
            si += 1
            a = O[d] + 4 * gp
            for i in range(4):
                k.e(f"v_cvt_pk_bf16_f32 {v(e0 + i)}, {v(a + 2 * i)}, {v(a + 2 * i + 1)}")
            k.e("s_nop 1")
            k.e(f"v_permlane32_swap_b32 {v(e0)}, {v(e0 + 2)}")
            k.e(f"v_permlane32_swap_b32 {v(e0 + 1)}, {v(e0 + 3)}")
            k.e("s_nop 1")
            k.e(f"buffer_store_dwordx4 {v(e0, 4)}, {v(t[7])}, {s(SRD_O, 4)}, 0 offen offset:{64 * d + 16 * gp}")
    if "clock" in DIAG:
        k.e("s_waitcnt vmcnt(0)")
        k.e("s_memrealtime s[70:71]")
        k.e("s_waitcnt lgkmcnt(0)")
        k.e(f"s_lshl_b32 s60, s2, 3")
        k.e(f"s_add_u32 s60, s60, {s(S_WAVE)}")
        k.e(f"s_cmp_lt_u32 s60, 8")
        k.e(f"s_cbranch_scc0 L_{name}_end")
        k.e("s_mov_b32 s64, s58")
        k.e("s_mov_b32 s65, s59")
        k.e("s_mov_b32 s66, 256")
        k.e("s_mov_b32 s67, 0x00020000")
        k.e(f"s_lshl_b32 s60, s60, 5")
        k.e(f"v_mov_b32 v1, s60")
        for i in range(8):
            k.e(f"v_mov_b32 v{2 + i}, s{50 + i}")
        k.e(f"v_cmp_eq_u32 vcc, 0, {v(vLane)}")
        k.e("s_and_saveexec_b64 s[62:63], vcc")
        k.e("buffer_store_dwordx4 v[2:5], v1, s[64:67], 0 offen")
        k.e("buffer_store_dwordx4 v[6:9], v1, s[64:67], 0 offen offset:16")
        for i in range(4):
            k.e(f"v_mov_b32 v{2 + i}, s{68 + i}")
        k.e("buffer_store_dwordx4 v[2:5], v1, s[64:67], 0 offen offset:128")
        k.e("s_waitcnt vmcnt(0)")
    k.l(f"L_{name}_end")
    k.e("s_endpgm")
    return k, LDS_BYTES, NWG


def make_attn():
    k, lds, nwg = gen_attn("gqa_attn_kernel")
    return (k, (nwg, 1, 1), (512, 1, 1), lds)
```

```python
import sys, os
from gen import *

def make_qproj():
    k, lds, nwg = gen_gemm("gqa_qproj_kernel", M=NTOK, N=HQ * DH, K=D, BM=128, BN=128,
                           a_slot=KA_X, a_off=0, a_bytes=NTOK * D * 2,
                           b_slot=KA_WQ, b_off=0, b_bytes=D * HQ * DH * 2,
                           c_slot=KA_WS, c_off=WS_Q_OFF, c_bytes=NTOK * HQ * DH * 2,
                           tile_map=tile_map_qproj, NSTAGE=int(os.environ.get('QP_NST', '4')), nt_a='a' in os.environ.get('QP_NT', ''), nt_b='b' in os.environ.get('QP_NT', ''), krot='q' in os.environ.get('KROT', ''), selfpf='q' in os.environ.get('SELFPF', ''))
    return (k, (nwg, 1, 1), (512, 1, 1), lds)

def make_oproj():
    k, lds, nwg = gen_gemm("gqa_oproj_kernel", M=NTOK, N=D, K=HQ * DH, BM=64, BN=64,
                           a_slot=KA_WS, a_off=WS_O_OFF, a_bytes=NTOK * HQ * DH * 2,
                           b_slot=KA_WO, b_off=0, b_bytes=HQ * DH * D * 2,
                           c_slot=KA_OUT, c_off=0, c_bytes=NTOK * D * 2,
                           tile_map=tile_map_oproj, NSTAGE=int(os.environ.get('OP_NST', '4')), nt_a='a' in os.environ.get('OP_NT', ''), nt_b='b' in os.environ.get('OP_NT', ''), krot='o' in os.environ.get('KROT', ''), selfpf='o' in os.environ.get('SELFPF', ''))
    return (k, (nwg, 1, 1), (512, 1, 1), lds)

if __name__ == "__main__":
    which = sys.argv[1] if len(sys.argv) > 1 else "all"
    outp = sys.argv[2] if len(sys.argv) > 2 else OUT_PATH
    ks = []
    if which in ("all", "qproj"):
        ks.append(make_qproj())
    if which in ("all", "attn"):
        import os
        if os.environ.get('ATTN_VER', '2') == '1':
            from gen_attn import make_attn
        else:
            from gen_attn2 import make_attn
        ks.append(make_attn())
    if which in ("all", "oproj"):
        ks.append(make_oproj())
    open(outp, "w").write(build_file(ks))
    print("wrote", outp, "kernels:", [k[0].name for k in ks], "vgprs:", [k[0].nv for k in ks])
```
